```python
import torch

def _softmax(x, axis=-1):
    return torch.softmax(x, dim=axis)

def _gelu(x):
    return torch.nn.functional.gelu(x, approximate='tanh')

def _silu(x):
    return torch.nn.functional.silu(x)

def _sigmoid(x):
    return torch.sigmoid(x)

def _layernorm(x, axis=-1, eps=1e-05):
    m = x.mean(dim=axis, keepdim=True)
    v = x.var(dim=axis, keepdim=True, unbiased=False)
    return (x - m) / torch.sqrt(v + eps)

def _scatter_add(tgt, idx, src, axis=0):
    return tgt.clone().index_add_(axis, idx, src)

def _segment_sum(src, seg, n):
    out = torch.zeros((n,) + src.shape[1:], dtype=src.dtype)
    return out.index_add_(0, seg, src)

def _pad(x, pw):
    flat = tuple((v for pair in reversed(pw) for v in pair))
    return torch.nn.functional.pad(x, flat)
kernel_name = 'adaLN_cond__sliding_local_dilated__glu_gated_geglu__prompt'

def setup_inputs():

    _w = lambda a: (lambda t: t.to(torch.bfloat16) if t.is_floating_point() else t)(torch.as_tensor(a))

    def _A_setup():
        B, S, D = (1, 2048, 512)
        return {'x': _w((lambda *s: torch.randn(*s, dtype=torch.bfloat16) * 0.05)(B, S, D)), 'wqkv': _w((lambda *s: torch.randn(*s, dtype=torch.bfloat16) * 0.05)(D, 3 * D)), 'wo': _w((lambda *s: torch.randn(*s, dtype=torch.bfloat16) * 0.05)(D, D))}
    _A_in = _A_setup()

    def _B_setup():
        B, S, Dm, Df = (1, 2048, 512, 1792)
        return {'x': _w((lambda *s: torch.randn(*s, dtype=torch.bfloat16) * 0.05)(B, S, Dm)), 'w_gate': _w((lambda *s: torch.randn(*s, dtype=torch.bfloat16) * 0.8)(Dm, Df) * Dm ** (-0.5)), 'w_up': _w((lambda *s: torch.randn(*s, dtype=torch.bfloat16) * 0.8)(Dm, Df) * Dm ** (-0.5)), 'w_down': _w((lambda *s: torch.randn(*s, dtype=torch.bfloat16) * 0.8)(Df, Dm) * Df ** (-0.5))}
    _B_in = _B_setup()
    return {'A_x': _A_in['x'], 'A_wqkv': _A_in['wqkv'], 'A_wo': _A_in['wo'], 'B_x': _B_in['x'], 'B_w_gate': _B_in['w_gate'], 'B_w_up': _B_in['w_up'], 'B_w_down': _B_in['w_down'], 'c': _w((lambda *s: torch.randn(*s, dtype=torch.bfloat16) * 0.2)(1, 512) * 8.0), 'w_mod': _w((lambda *s: torch.randn(*s, dtype=torch.bfloat16) * 0.2)(512, 6 * 512) * 512 ** (-0.5) * 8.0)}

def reference(A_x, A_wqkv, A_wo, B_x, B_w_gate, B_w_up, B_w_down, c, w_mod):

    def _A_ref(x, wqkv, wo):
        B, S, D = x.shape
        H = 32
        Dh = D // H
        W, dil = (8, 2)
        qkv = (lambda x, *d: x.permute(*d))((x @ wqkv).reshape(B, S, 3, H, Dh), 2, 0, 3, 1, 4)
        q, k, v = (qkv[0], qkv[1], qkv[2])
        scale = Dh ** (-0.5)
        pos = torch.arange(S)
        off = torch.arange(W) * dil
        idx = pos[:, None] - off[None, :]
        mask = idx >= 0
        idx_c = torch.where(mask, idx, 0).reshape(-1)
        kg = k[:, :, idx_c, :].reshape(B, H, S, W, Dh)
        vg = v[:, :, idx_c, :].reshape(B, H, S, W, Dh)
        logits = torch.einsum('bhsd,bhswd->bhsw', q, kg) * scale
        logits = torch.where(mask[None, None, :, :], logits, -1000000000.0)
        attn = _softmax(logits, axis=-1)
        o = torch.einsum('bhsw,bhswd->bhsd', attn, vg)
        return (lambda x, *d: x.permute(*d))(o, 0, 2, 1, 3).reshape(B, S, D) @ wo

    def _B_ref(x, w_gate, w_up, w_down):
        g = torch.einsum('bsd,df->bsf', x, w_gate)
        u = torch.einsum('bsd,df->bsf', x, w_up)
        h = _gelu(g) * u
        return torch.einsum('bsf,fd->bsd', h, w_down)
    x = A_x
    mod = (_silu(c) @ w_mod).reshape(c.shape[0], 6, 1, -1)
    sa, ca, ga, sb, cb, gb = (mod[:, 0].clone(), mod[:, 1].clone(), mod[:, 2].clone(), mod[:, 3].clone(), mod[:, 4].clone(), mod[:, 5].clone())
    h = _layernorm(x, axis=-1) * (1 + ca) + sa
    x = x + ga * _A_ref(h, A_wqkv, A_wo)
    h = _layernorm(x, axis=-1) * (1 + cb) + sb
    x = x + gb * _B_ref(h, B_w_gate, B_w_up, B_w_down)
    return x
```

```python
class Asm:
    def __init__(self):
        self.lines = []
        self.lbl = 0
    def __call__(self, s):
        for l in s.strip('\n').split('\n'):
            self.lines.append('    ' + l.strip())
    def label(self, name):
        self.lines.append(name + ':')
    def newlabel(self, p='L'):
        self.lbl += 1
        return f'{p}_{self.lbl}'
    def comment(self, s):
        self.lines.append('    ; ' + s)
    def text(self):
        return '\n'.join(self.lines) + '\n'

def kernel_header(name):
    return f'''.globl {name}
.p2align 8
.type {name},@function
{name}:
'''

def kernel_desc(name, vgpr, sgpr, accum=None):
    if accum is None:
        accum = ((vgpr + 3) // 4) * 4
    return f'''.amdhsa_kernel {name}
  .amdhsa_next_free_vgpr {vgpr}
  .amdhsa_next_free_sgpr {sgpr}
  .amdhsa_accum_offset {accum}
  .amdhsa_group_segment_fixed_size 0
  .amdhsa_kernarg_size 96
  .amdhsa_user_sgpr_count 2
  .amdhsa_user_sgpr_kernarg_segment_ptr 1
  .amdhsa_system_sgpr_workgroup_id_x 1
.end_amdhsa_kernel
'''

KA = dict(A_x=0, A_wqkv=8, A_wo=16, B_x=24, B_w_gate=32, B_w_up=40, B_w_down=48, c=56, w_mod=64, out=72, dbg=80, ws=88)
SIZES = dict(A_x=2048*512*2, A_wqkv=512*1536*2, A_wo=512*512*2, B_w_gate=512*1792*2, B_w_up=512*1792*2,
             B_w_down=1792*512*2, c=1024, w_mod=512*3072*2, out=2048*512*2)
WS_MOD = 0x0
WS_STAT1 = 0x4000
WS_VEC = 0x8000
WS_PSTAT = 0x10000
WS_O = 0x100000
WS_X1 = 0x300000
WS_X1G = 0x500000
WS_HH = 0x700000

def srd(a, d, base, nbytes):
    a(f'''s_mov_b32 s{d}, s{base}
    s_mov_b32 s{d+1}, s{base+1}
    s_mov_b32 s{d+2}, {nbytes}
    s_mov_b32 s{d+3}, 0x00020000''')

def srd_off(a, d, base, off, nbytes):
    a(f'''s_add_u32 s{d}, s{base}, {off}
    s_addc_u32 s{d+1}, s{base+1}, 0
    s_mov_b32 s{d+2}, {nbytes}
    s_mov_b32 s{d+3}, 0x00020000''')

def wave_sum(a, v, tmp=None):
    a(f'''s_nop 1
    v_add_f32_dpp {v}, {v}, {v} quad_perm:[1,0,3,2] row_mask:0xf bank_mask:0xf
    s_nop 1
    v_add_f32_dpp {v}, {v}, {v} quad_perm:[2,3,0,1] row_mask:0xf bank_mask:0xf
    s_nop 1
    v_add_f32_dpp {v}, {v}, {v} row_half_mirror row_mask:0xf bank_mask:0xf
    s_nop 1
    v_add_f32_dpp {v}, {v}, {v} row_mirror row_mask:0xf bank_mask:0xf
    s_nop 1
    v_mov_b32 {tmp}, {v}
    s_nop 1
    v_permlane16_swap_b32 {tmp}, {v}
    s_nop 1
    v_add_f32 {v}, {v}, {tmp}
    v_mov_b32 {tmp}, {v}
    s_nop 1
    v_permlane32_swap_b32 {tmp}, {v}
    s_nop 1
    v_add_f32 {v}, {v}, {tmp}''')
```

```python
from asmlib import *

def gen_k0():
    a = Asm()
    name = 'k0_kernel'
    a.lines.append(kernel_header(name))
    a(f'''s_load_dwordx2 s[4:5], s[0:1], {KA['w_mod']}
    s_load_dwordx2 s[6:7], s[0:1], {KA['c']}
    s_load_dwordx2 s[8:9], s[0:1], {KA['ws']}
    s_load_dwordx2 s[10:11], s[0:1], {KA['A_x']}
    s_cmp_ge_u32 s2, 160
    s_cbranch_scc1 K0_END
    s_cmp_ge_u32 s2, 96
    s_waitcnt lgkmcnt(0)
    s_cbranch_scc1 K0_STATS''')
    srd(a, 12, 4, SIZES['w_mod'])
    srd(a, 16, 6, SIZES['c'])
    srd(a, 20, 8, 0x1000000)
    a('''v_and_b32 v1, 3, v0            ; cc
    v_lshrrev_b32 v2, 2, v0             ; kg 0..63
    v_mul_u32_u24 v3, 49152, v2         ; kg*8*6144
    v_lshl_add_u32 v3, v1, 4, v3        ; + cc*16
    v_lshlrev_b32 v4, 4, v2
    s_lshl_b32 s24, s2, 6''')
    a('buffer_load_dwordx4 v[8:11], v4, s[16:19], 0 offen')
    for i in range(8):
        a(f'''s_add_u32 s25, s24, {i*6144}
        buffer_load_dwordx4 v[{16+4*i}:{19+4*i}], v3, s[12:15], s25 offen''')
    a('s_waitcnt vmcnt(8)')
    for j in range(4):
        a(f'''v_lshlrev_b32 v{48+2*j}, 16, v{8+j}
        v_and_b32 v{49+2*j}, 0xffff0000, v{8+j}''')
    for j in range(8):
        a(f'v_mul_f32 v{56+j}, 0xbfb8aa3b, v{48+j}')
    for j in range(8):
        a(f'v_exp_f32 v{56+j}, v{56+j}')
    for j in range(8):
        a(f'v_add_f32 v{56+j}, 1.0, v{56+j}')
    for j in range(8):
        a(f'v_rcp_f32 v{56+j}, v{56+j}')
    a('s_nop 0')
    for j in range(8):
        a(f'v_mul_f32 v{48+j}, v{48+j}, v{56+j}')
    for j in range(8):
        a(f'v_mov_b32 v{64+j}, 0')
    for i in range(8):
        a(f's_waitcnt vmcnt({7-i})')
        for j in range(4):
            a(f'''v_lshlrev_b32 v72, 16, v{16+4*i+j}
            v_and_b32 v73, 0xffff0000, v{16+4*i+j}
            v_fmac_f32 v{64+2*j}, v72, v{48+i}
            v_fmac_f32 v{65+2*j}, v73, v{48+i}''')
    a('''v_lshlrev_b32 v5, 7, v2
    v_lshl_add_u32 v5, v1, 5, v5
    ds_write_b128 v5, v[64:67]
    ds_write_b128 v5, v[68:71] offset:16
    s_waitcnt lgkmcnt(0)
    s_barrier
    v_and_b32 v6, 31, v0
    v_lshrrev_b32 v7, 5, v0
    v_lshlrev_b32 v6, 2, v6
    v_lshl_add_u32 v6, v7, 10, v6''')
    for i in range(8):
        a(f'ds_read_b32 v{16+i}, v6 offset:{128*i}')
    a('s_waitcnt lgkmcnt(0)')
    for i in range(1, 8):
        a(f'v_add_f32 v16, v16, v{16+i}')
    a('''v_lshlrev_b32 v6, 2, v0
    ds_write_b32 v6, v16 offset:8192
    s_waitcnt lgkmcnt(0)
    s_barrier
    v_cmp_gt_u32 vcc, 32, v0
    s_and_saveexec_b64 s[30:31], vcc
    s_cbranch_execz K0_END''')
    for i in range(8):
        a(f'ds_read_b32 v{16+i}, v6 offset:{8192+128*i}')
    a('s_waitcnt lgkmcnt(0)')
    for i in range(1, 8):
        a(f'v_add_f32 v16, v16, v{16+i}')
    a(f'''s_lshl_b32 s24, s2, 7
    buffer_store_dword v16, v6, s[20:23], s24 offen offset:{WS_MOD}
    s_endpgm''')
    a.label('K0_STATS')
    srd(a, 12, 10, SIZES['A_x'])
    srd(a, 20, 8, 0x1000000)
    a('''v_and_b32 v1, 63, v0
    v_lshrrev_b32 v2, 6, v0
    v_lshlrev_b32 v3, 4, v1
    v_lshl_add_u32 v3, v2, 13, v3
    s_sub_u32 s24, s2, 96
    s_lshl_b32 s24, s24, 15             ; 32 rows*1024''')
    for i in range(8):
        if i == 4: a('s_add_u32 s26, s24, 4096')
        a(f'buffer_load_dwordx4 v[{16+4*i}:{19+4*i}], v3, s[12:15], s{24 if i < 4 else 26} offen offset:{1024*(i%4)}')
    a('''v_lshlrev_b32 v4, 6, v2          ; wave*8*8 bytes
    s_lshr_b32 s25, s24, 7              ; (row0*1024)>>7 = row0*8
    s_add_u32 s25, s25, ''' + str(WS_STAT1))
    for i in range(8):
        b = 16 + 4 * i
        a(f's_waitcnt vmcnt({7-i})')
        for j in range(4):
            a(f'''v_lshlrev_b32 v{48+2*j}, 16, v{b+j}
            v_and_b32 v{49+2*j}, 0xffff0000, v{b+j}''')
        a('''v_add_f32 v56, v48, v49
        v_add_f32 v57, v50, v51
        v_add_f32 v58, v52, v53
        v_add_f32 v59, v54, v55
        v_add_f32 v56, v56, v57
        v_add_f32 v58, v58, v59
        v_add_f32 v56, v56, v58''')
        wave_sum(a, 'v56', 'v57')
        a('v_mul_f32 v56, 0x3b000000, v56')
        for j in range(8):
            a(f'v_sub_f32 v{48+j}, v{48+j}, v56')
        a('v_mul_f32 v58, v48, v48')
        for j in range(1, 8):
            a(f'v_fmac_f32 v58, v{48+j}, v{48+j}')
        wave_sum(a, 'v58', 'v57')
        a(f'''v_mov_b32 v59, 0x3727c5ac
        v_fmac_f32 v59, 0x3b000000, v58
        v_rsq_f32 v60, v59
        s_nop 0
        v_mul_f32 v61, v56, v60
        v_sub_f32 v61, 0, v61
        buffer_store_dwordx2 v[60:61], v4, s[20:23], s25 offen offset:{8*i}''')
    a.label('K0_END')
    a('s_endpgm')
    return a.text(), kernel_desc(name, 80, 40)
```

```python
import sys, importlib
sys.path.insert(0, 'gen')
import asmlib, k0
parts = []
launches = []
descs = []
def add(launch, text, desc):
    launches.append(launch); parts.append(text); descs.append(desc)
which = sys.argv[2].split(',') if len(sys.argv) > 2 else ['k0', 'k1', 'k2', 'k3', 'k4']
if 'k0' in which:
    t, d = k0.gen_k0(); add('; @launch kernel=k0_kernel grid=(160,1,1) block=(256,1,1) lds=16384', t, d)
for kn in ['k1', 'k2', 'k3', 'k4']:
    if kn in which:
        m = importlib.import_module(kn)
        add(*(m.gen(prof=True) if 'prof' in which else m.gen()))
out = '\n'.join(launches) + '\n.amdgcn_target "amdgcn-amd-amdhsa--gfx950"\n.text\n' + '\n'.join(parts) + '\n.section .rodata,"a"\n.p2align 6\n' + '.p2align 6\n'.join(descs)
open(sys.argv[1], 'w').write(out)
```

```python
class Asm:
    def __init__(self):
        self.lines = []
        self.lbl = 0
    def __call__(self, s):
        for l in s.strip('\n').split('\n'):
            self.lines.append('    ' + l.strip())
    def label(self, name):
        self.lines.append(name + ':')
    def newlabel(self, p='L'):
        self.lbl += 1
        return f'{p}_{self.lbl}'
    def comment(self, s):
        self.lines.append('    ; ' + s)
    def text(self):
        return '\n'.join(self.lines) + '\n'

def kernel_header(name):
    return f'''.globl {name}
.p2align 8
.type {name},@function
{name}:
'''

def kernel_desc(name, vgpr, sgpr, accum=None):
    if accum is None:
        accum = ((vgpr + 3) // 4) * 4
    return f'''.amdhsa_kernel {name}
  .amdhsa_next_free_vgpr {vgpr}
  .amdhsa_next_free_sgpr {sgpr}
  .amdhsa_accum_offset {accum}
  .amdhsa_group_segment_fixed_size 0
  .amdhsa_kernarg_size 96
  .amdhsa_user_sgpr_count 2
  .amdhsa_user_sgpr_kernarg_segment_ptr 1
  .amdhsa_system_sgpr_workgroup_id_x 1
.end_amdhsa_kernel
'''

KA = dict(A_x=0, A_wqkv=8, A_wo=16, B_x=24, B_w_gate=32, B_w_up=40, B_w_down=48, c=56, w_mod=64, out=72, dbg=80, ws=88)
SIZES = dict(A_x=2048*512*2, A_wqkv=512*1536*2, A_wo=512*512*2, B_w_gate=512*1792*2, B_w_up=512*1792*2,
             B_w_down=1792*512*2, c=1024, w_mod=512*3072*2, out=2048*512*2)
WS_MOD = 0x0
WS_STAT1 = 0x4000
WS_VEC = 0x8000
WS_PSTAT = 0x10000
WS_O = 0x100000
WS_X1 = 0x300000
WS_X1G = 0x500000
WS_HH = 0x700000

def srd(a, d, base, nbytes):
    a(f'''s_mov_b32 s{d}, s{base}
    s_mov_b32 s{d+1}, s{base+1}
    s_mov_b32 s{d+2}, {nbytes}
    s_mov_b32 s{d+3}, 0x00020000''')

def srd_off(a, d, base, off, nbytes):
    a(f'''s_add_u32 s{d}, s{base}, {off}
    s_addc_u32 s{d+1}, s{base+1}, 0
    s_mov_b32 s{d+2}, {nbytes}
    s_mov_b32 s{d+3}, 0x00020000''')

def wave_sum(a, v, tmp=None):
    a(f'''s_nop 1
    v_add_f32_dpp {v}, {v}, {v} quad_perm:[1,0,3,2] row_mask:0xf bank_mask:0xf
    s_nop 1
    v_add_f32_dpp {v}, {v}, {v} quad_perm:[2,3,0,1] row_mask:0xf bank_mask:0xf
    s_nop 1
    v_add_f32_dpp {v}, {v}, {v} row_half_mirror row_mask:0xf bank_mask:0xf
    s_nop 1
    v_add_f32_dpp {v}, {v}, {v} row_mirror row_mask:0xf bank_mask:0xf
    s_nop 1
    v_mov_b32 {tmp}, {v}
    s_nop 1
    v_permlane16_swap_b32 {tmp}, {v}
    s_nop 1
    v_add_f32 {v}, {v}, {tmp}
    v_mov_b32 {tmp}, {v}
    s_nop 1
    v_permlane32_swap_b32 {tmp}, {v}
    s_nop 1
    v_add_f32 {v}, {v}, {tmp}''')

class Prof:
    def __init__(self, a, on, base=84):
        self.a = a; self.on = on; self.n = 0; self.base = base
    def stamp(self):
        if self.on:
            self.a(f's_memtime s[{self.base+2*self.n}:{self.base+1+2*self.n}]'); self.n += 1
    def dump(self, endlabel, wave_sgpr):
        if not self.on: return
        a = self.a
        a(f'''s_cmp_lg_u32 s2, 0
        s_cbranch_scc1 {endlabel}
        s_cmp_lg_u32 s{wave_sgpr}, 0
        s_cbranch_scc1 {endlabel}
        s_load_dwordx2 s[4:5], s[0:1], {KA['dbg']}
        s_waitcnt lgkmcnt(0)''')
        srd(a, 12, 4, 256)
        a('v_mov_b32 v1, 0')
        for i in range(self.n):
            a(f'''v_mov_b32 v2, s{self.base+2*i}
            buffer_store_dword v2, v1, s[12:15], 0 offen offset:{4*i}''')
```
